```python
import torch

def _softmax(x, axis=-1):
    return torch.softmax(x, dim=axis)
def _gelu(x):
    return torch.nn.functional.gelu(x, approximate="tanh")
def _silu(x):
    return torch.nn.functional.silu(x)
def _sigmoid(x):
    return torch.sigmoid(x)
def _layernorm(x, axis=-1, eps=1e-5):
    m = x.mean(dim=axis, keepdim=True)
    v = x.var(dim=axis, keepdim=True, unbiased=False)
    return (x - m) / torch.sqrt(v + eps)
def _scatter_add(tgt, idx, src, axis=0):
    return tgt.clone().index_add_(axis, idx, src)
def _segment_sum(src, seg, n):
    out = torch.zeros((n,) + src.shape[1:], dtype=src.dtype)
    return out.index_add_(0, seg, src)
def _pad(x, pw):
    flat = tuple(v for pair in reversed(pw) for v in pair)
    return torch.nn.functional.pad(x, flat)

kernel_name = 'standalone__gated_linear_recurrence__prompt'

def setup_inputs():

    _w = (lambda a: (lambda t: t.to(torch.bfloat16) if t.is_floating_point() else t)(torch.as_tensor(a)))
    B, H, T, D = 1, 32, 2048, 128
    return {
        "q": _w((lambda *s: torch.randn(*s, dtype=torch.bfloat16) * 0.05)(B, H, T, D)),
        "k": _w((lambda *s: torch.randn(*s, dtype=torch.bfloat16) * 0.05)(B, H, T, D)),
        "v": _w((lambda *s: torch.randn(*s, dtype=torch.bfloat16) * 0.05)(B, H, T, D)),
        "g": _w((lambda *s: torch.randn(*s, dtype=torch.bfloat16) * 0.8)(B, H, T, D)),
    }

def reference(q, k, v, g):
    B, H, T, D = q.shape
    scale = D ** -0.5
    a = _sigmoid(g)
    S = k[:, :, 0, :, None] * v[:, :, 0, None, :] * 0.0
    outs = []
    for t in range(T):
        S = a[:, :, t, :, None] * S + k[:, :, t, :, None] * v[:, :, t, None, :]
        ot = torch.einsum("bhd,bhde->bhe", q[:, :, t, :], S) * scale
        outs.append(ot)
    return torch.stack(outs, 2)
```

```python
import re
TRANS = ("v_exp_f32", "v_rcp_f32", "v_log_f32", "v_rsq_f32", "v_sqrt_f32")
def regs_of(tok):
    tok = tok.strip().lstrip('-')
    m = re.fullmatch(r"v\[(\d+):(\d+)\]", tok)
    if m: return [("v", i) for i in range(int(m.group(1)), int(m.group(2)) + 1)]
    m = re.fullmatch(r"v(\d+)", tok)
    if m: return [("v", int(m.group(1)))]
    m = re.fullmatch(r"s\[(\d+):(\d+)\]", tok)
    if m: return [("s", i) for i in range(int(m.group(1)), int(m.group(2)) + 1)]
    m = re.fullmatch(r"s(\d+)", tok)
    if m: return [("s", int(m.group(1)))]
    if tok == "vcc": return [("vcc", 0)]
    if tok == "exec": return [("exec", 0)]
    if tok == "m0": return [("m0", 0)]
    return []
class Asm:
    def __init__(self):
        self.lines = []; self.pos = 0
        self.valu_w = {}; self.trans_w = {}; self.mfma_w = {}; self.mfma_c = {}; self.store_r = {}
        self.valu_sw = {}; self.salu_m0 = -99; self.count = {}
    def raw(self, s): self.lines.append(s)
    def comment(self, s): self.lines.append("    ; " + s)
    def nop(self, n):
        while n > 0:
            k = min(n, 16); self.lines.append(f"    s_nop {k-1}"); self.pos += k; n -= k
    def label(self, name):
        self.nop(12); self.lines.append(name + ":")
    def __call__(self, text):
        text = text.strip()
        op, _, rest = text.partition(" ")
        ops = [t.strip() for t in re.split(r",(?![^\[]*\])", rest)] if rest else []
        toks = []
        for t in ops:
            toks.append(t.split(" ")[0])
        R = [regs_of(t) for t in toks]
        need = 0
        def req(tbl, regs, dist):
            nonlocal need
            for r in regs:
                if r in tbl: need = max(need, tbl[r] + dist + 1 - self.pos)
        flat = lambda L: [r for x in L for r in x]
        if op.startswith("v_mfma"):
            D, A, B, C = R[0], R[1], R[2], R[3]
            req(self.valu_w, A + B + C, 2)
            req(self.mfma_w, A + B, 8)
            for r in C:
                if r in self.mfma_w and self.mfma_w[r + ("id",)] != tuple(C): need = max(need, self.mfma_w[r] + 6 + 1 - self.pos)
            for r in D:
                if r not in C and r in self.mfma_w: need = max(need, self.mfma_w[r] + 8 + 1 - self.pos)
            self.nop(need)
            for r in D: self.mfma_w[r] = self.pos; self.mfma_w[r + ("id",)] = tuple(D)
            for r in C: self.mfma_c[r] = self.pos
        elif op.startswith("v_"):
            isdpp = "_dpp" in op
            if op.startswith("v_cmp"): W = R[0]; Rd = flat(R[1:])
            elif op.startswith("v_swap"): W = R[0] + R[1]; Rd = W
            elif op.startswith("v_readfirstlane") or op.startswith("v_readlane"): W = R[0]; Rd = flat(R[1:]); req(self.valu_w, Rd, 1)
            else: W = R[0]; Rd = flat(R[1:])
            if isdpp or op.startswith("v_fmac"): Rd = Rd + W
            if isdpp: req(self.valu_w, R[1], 2)
            if op.startswith("v_permlane"): W = R[0] + R[1]; Rd = W; req(self.valu_w, Rd, 2)
            if op.replace("_dpp", "") not in TRANS: req(self.trans_w, Rd, 1)
            req(self.mfma_w, Rd + W, 8)
            req(self.mfma_c, W, 3)
            req(self.store_r, W, 2)
            req(self.valu_sw, [r for r in Rd if r[0] != "v"], 2)
            self.nop(need)
            for r in W:
                if r[0] == "v":
                    self.valu_w[r] = self.pos
                    if op.replace("_dpp", "") in TRANS: self.trans_w[r] = self.pos
                    else: self.trans_w.pop(r, None)
                else: self.valu_sw[r] = self.pos
        elif op.startswith("ds_") or op.startswith("buffer_") or op.startswith("global_"):
            allr = flat(R)
            req(self.mfma_w, [r for r in allr if r[0] == "v"], 8)
            req(self.valu_sw, [r for r in allr if r[0] == "s"], 5)
            if " lds" in text: need = max(need, self.salu_m0 + 1 + 1 - self.pos)
            isload = ("load" in op or "read" in op) and " lds" not in text
            if isload: req(self.store_r, R[0], 1); req(self.mfma_c, R[0], 3)
            self.nop(need)
            if ("store" in op) and ("x4" in op or "x3" in op):
                for r in allr:
                    if r[0] == "v": self.store_r[r] = self.pos
        elif op.startswith("s_"):
            if R and R[0] and R[0][0][0] == "m0": self.salu_m0 = self.pos
            rd = flat(R)
            req(self.valu_sw, [r for r in rd if r[0] != "v"], 2)
            if op.startswith("s_cbranch") or op == "s_branch":
                need = max(need, 0)
            self.nop(need)
        self.lines.append("    " + text); self.pos += 1
        self.count[op] = self.count.get(op, 0) + 1
    def text(self): return "\n".join(self.lines) + "\n"
```

```python
import sys, struct
sys.path.insert(0, "gen")
from asmlib import Asm
def f2u(x): return struct.unpack("<I", struct.pack("<f", x))[0]
LDS_K, LDS_V, LDS_TOT, LDS_NONCE, LDS_SIZE = 0, 65536, 131072, 135168, 135424
SLOT = 0x8400; FLAGS = 1 << 24
NB = 16777216
a = Asm()
def vr(b, n): return f"v[{b}:{b+n-1}]"
RI = lambda t, j, i=0: 16 + t * 32 + j * 8 + i
GR = lambda j, t: 144 + (j * 2 + t) * 4
KR = lambda j, t: 176 + (j * 2 + t) * 4
QR = lambda j, t: 208 + (j * 2 + t) * 4
TI = lambda j, i=0: 80 + j * 8 + i
vOFF, vOFFV, vKW, vTR0, vTR1, vONE, vL, vT = 1, 2, 3, 4, 5, 6, 7, 8
STAMP = "stamp" in sys.argv
def stamp(idx):
    if not STAMP: return
    a("s_memtime s[96:97]"); a("s_waitcnt lgkmcnt(0)"); a("s_sub_u32 s96, s96, s98")
    a(f"s_mov_b32 s{80+idx}, s96")

a.raw(f"""; Gated linear recurrence: 256 WGs = 32 heads x 8 segments of 256 tokens, 8 waves each owning a 32-token block.
; @launch grid=(256,1,1) block=(512,1,1) lds={LDS_SIZE}
.amdgcn_target "amdgcn-amd-amdhsa--gfx950"
.text
.globl standalone__gated_linear_recurrence__prompt_kernel
.p2align 8
.type standalone__gated_linear_recurrence__prompt_kernel,@function
standalone__gated_linear_recurrence__prompt_kernel:""")
a("s_cmp_ge_u32 s2, 256"); a("s_cbranch_scc1 L_end")
if STAMP: a("s_memtime s[98:99]")
a("s_load_dwordx8 s[40:47], s[0:1], 0"); a("s_load_dwordx4 s[48:51], s[0:1], 32"); a("s_load_dwordx2 s[52:53], s[0:1], 48")
a("v_lshrrev_b32 v8, 6, v0"); a("v_and_b32 v7, 63, v0")
a("v_readfirstlane_b32 s34, v8")
a("s_and_b32 s32, s2, 31"); a("s_lshr_b32 s33, s2, 5")
a("s_sub_u32 s35, 11, s34"); a("s_cmp_lt_u32 s34, 4"); a("s_cselect_b32 s35, s34, s35")
a("s_lshl_b32 s36, s32, 19"); a("s_lshl_b32 s38, s33, 16"); a("s_add_u32 s36, s36, s38")
a("s_lshl_b32 s38, s35, 13"); a("s_add_u32 s36, s36, s38")
a("v_and_b32 v9, 15, v7"); a("v_lshrrev_b32 v10, 4, v7")
a("v_lshlrev_b32 v11, 4, v10"); a("v_lshl_add_u32 v1, v9, 9, v11")
a("v_lshrrev_b32 v12, 1, v10"); a("v_lshlrev_b32 v12, 3, v12"); a("v_xor_b32 v12, v12, v9")
a("v_lshl_add_u32 v2, v12, 9, v11")
a("v_lshlrev_b32 v13, 8, v10"); a("v_lshl_add_u32 v3, v12, 4, v13")
a("s_waitcnt lgkmcnt(0)")
for i, (sz) in enumerate([NB, NB, NB, NB, NB, 256, 268435456]):
    b = 4 + 4 * i
    a(f"s_mov_b32 s{b}, s{40+2*i}"); a(f"s_mov_b32 s{b+1}, s{41+2*i}"); a(f"s_mov_b32 s{b+2}, {sz}"); a(f"s_mov_b32 s{b+3}, 0x00020000")
SQ, SK, SV, SG, SO, SD, SW = [f"s[{4+4*i}:{7+4*i}]" for i in range(7)]
a("v_lshrrev_b32 v14, 3, v7"); a("v_lshlrev_b32 v14, 7, v14"); a("v_and_b32 v15, 7, v7"); a("v_lshl_add_u32 v14, v15, 2, v14")
a("s_lshl_b32 s39, s32, 10"); a(f"s_add_u32 s39, s39, {FLAGS}")
a(f"buffer_load_dword v15, v14, {SW}, s39 offen sc1")
for j in range(4):
    for t in range(2): a(f"buffer_load_dwordx4 {vr(GR(j,t),4)}, v1, {SG}, s36 offen offset:{t*256+j*64}")
for j in range(4):
    for t in range(2): a(f"buffer_load_dwordx4 {vr(KR(j,t),4)}, v1, {SK}, s36 offen offset:{t*256+j*64}")
a("s_lshl_b32 s38, s35, 13"); a(f"s_add_u32 s38, s38, {LDS_V}")
for t in range(2):
    for j in range(4):
        a(f"s_add_u32 m0, s38, {(t*4+j)*1024 - (t*256+j*64)}")
        a(f"buffer_load_dwordx4 v2, {SV}, s36 offen offset:{t*256+j*64} lds")
a(f"s_mov_b32 s62, {hex(f2u(-1.4426950408889634))}"); a("s_mov_b32 s63, s62")
a(f"s_mov_b32 s64, {hex(f2u(128 ** -0.5))}"); a("s_mov_b32 s65, s64")
a("s_mov_b32 s66, 1.0"); a("s_mov_b32 s67, 1.0"); a("s_mov_b32 s68, -1.0"); a("s_mov_b32 s69, -1.0")
a("s_mov_b32 s56, 0x0000ffff"); a("s_mov_b32 s57, 0x0000ffff"); a("s_mov_b32 s58, 0xffff0000"); a("s_mov_b32 s59, 0xffff0000")
a("s_mov_b32 s60, 0x00010001"); a("s_mov_b32 s61, 0x00010001"); a("s_mov_b32 s70, 0xffff0000")
a("v_mov_b32 v6, 1.0")
a("v_lshrrev_b32 v11, 2, v7"); a("v_and_b32 v12, 3, v7"); a("v_lshrrev_b32 v13, 1, v12"); a("v_lshlrev_b32 v13, 3, v13")
a("v_xor_b32 v11, v11, v13"); a("v_lshlrev_b32 v11, 4, v11"); a("v_lshl_add_u32 v11, v12, 8, v11")
a("v_and_b32 v12, 1, v12"); a("v_lshl_add_u32 v4, v12, 3, v11"); a("v_xor_b32 v5, 8, v4")
a("v_lshlrev_b32 v11, 2, v10")
for r in range(4):
    a(f"v_add_u32 v12, {r}, v11")
    a(f"v_cmp_le_u32 s[{40+2*r}:{41+2*r}], v12, v9"); a(f"v_cmp_lt_u32 s[{48+2*r}:{49+2*r}], v12, v9")
a("s_waitcnt vmcnt(24)")
a("s_mov_b32 s37, 0")
a.label("L_nonce")
a("s_add_u32 s37, s37, 1"); a("v_cmp_eq_u32 vcc, s37, v15"); a("s_nop 4"); a("s_cbranch_vccnz L_nonce")
a("v_mov_b32 v14, s37"); a("v_mov_b32 v15, 0"); a("s_lshl_b32 s38, s32, 3"); a("v_mov_b32 v13, s38")
a("s_mov_b64 exec, 1")
a("s_cmp_eq_u32 s34, 0"); a("s_cbranch_scc0 L_noatomic")
a(f"buffer_atomic_cmpswap v[14:15], v13, {SD}, 0 offen sc0 sc1")
a("s_branch L_atomic_done")
a.label("L_noatomic")
a(f"buffer_load_dword v14, v13, {SD}, 0 offen")
a.label("L_atomic_done")
a("s_mov_b64 exec, -1")
for j in range(4):
    for t in range(2): a(f"buffer_load_dwordx4 {vr(QR(j,t),4)}, v1, {SQ}, s36 offen offset:{t*256+j*64}")
stamp(0)
T1, T2 = 112, 120
def unpack(dst, src, n):
    for i in range(n):
        a(f"v_lshlrev_b32 v{dst+2*i}, 16, v{src+i}"); a(f"v_and_b32 v{dst+2*i+1}, s70, v{src+i}")
for j in range(4):
    a(f"s_waitcnt vmcnt({33-2*(j+1)})")
    b0, x = RI(0, j), RI(1, j)
    unpack(b0, GR(j, 0), 4); unpack(T1, GR(j, 1), 4)
    for base in (b0, T1):
        for i in range(0, 8, 2): a(f"v_pk_mul_f32 {vr(base+i,2)}, {vr(base+i,2)}, s[62:63]")
    for base in (b0, T1):
        for i in range(8): a(f"v_exp_f32 v{base+i}, v{base+i}")
    for base in (b0, T1):
        for i in range(0, 8, 2): a(f"v_pk_add_f32 {vr(base+i,2)}, {vr(base+i,2)}, s[66:67]")
    for i in range(0, 8, 2): a(f"v_pk_fma_f32 {vr(T2+i,2)}, {vr(b0+i,2)}, {vr(T1+i,2)}, s[68:69]")
    for i in range(8): a(f"v_add_f32_dpp v{x+i}, v{T2+i}, v6 row_shl:1 row_mask:0xf bank_mask:0xf bound_ctrl:0")
    for sh in (1, 2, 4, 8):
        for i in range(8): a(f"v_mul_f32_dpp v{x+i}, v{x+i}, v{x+i} row_shl:{sh} row_mask:0xf bank_mask:0xf")
    for i in range(0, 8, 2): a(f"v_pk_mul_f32 {vr(b0+i,2)}, {vr(x+i,2)}, {vr(T1+i,2)}")
    for i in range(0, 8, 2): a(f"v_pk_fma_f32 {vr(TI(j,i),2)}, {vr(x+i,2)}, {vr(T2+i,2)}, {vr(x+i,2)}")
a(f"v_max3_f32 v8, v{TI(0,0)}, v{TI(0,1)}, v{TI(0,2)}")
for i in range(3, 31, 2): a(f"v_max3_f32 v8, v8, v{80+i}, v{80+i+1}")
a(f"v_max_f32 v8, v8, v{80+31}")
a(f"s_mov_b32 s38, {hex(f2u(2.0**64))}")
a("v_cmp_nge_f32 s[72:73], s38, v8")
for i in range(32): a(f"v_rcp_f32 v{80+i}, v{80+i}")
a("s_lshl_b32 s38, s35, 9"); a(f"s_add_u32 s38, s38, {LDS_TOT}")
a("v_lshlrev_b32 v8, 5, v10"); a("v_add_u32 v8, s38, v8")
a("s_mov_b64 exec, s[60:61]")
for j in range(4):
    for hf in range(2): a(f"ds_write_b128 v8, {vr(TI(j,hf*4),4)} offset:{j*128+hf*16}")
a("s_mov_b64 exec, -1")
stamp(1)
a("s_lshl_b32 s38, s35, 13"); a("v_add_u32 v9, s38, v3")
for j in range(4):
    for t in range(2):
        for i in range(8): a(f"v_rcp_f32 v{112+t*8+i}, v{RI(t,j,i)}")
    for i in range(0, 16, 2): a(f"v_pk_mul_f32 {vr(112+i,2)}, {vr(112+i,2)}, s[64:65]")
    a(f"s_waitcnt vmcnt({25-2*(j+1)})")
    for t in range(2): unpack(128 + t * 8, KR(j, t), 4)
    for i in range(0, 16, 2): a(f"v_pk_mul_f32 {vr(112+i,2)}, {vr(112+i,2)}, {vr(128+i,2)}")
    for t in range(2):
        for i in range(4): a(f"v_cvt_pk_bf16_f32 v{KR(j,t)+i}, v{112+t*8+2*i}, v{112+t*8+2*i+1}")
    for t in range(2): a(f"ds_write_b128 v9, {vr(KR(j,t),4)} offset:{(t*4+j)*1024}")
stamp(2)
a("s_waitcnt vmcnt(8)")
a("s_cmp_eq_u32 s34, 0"); a("s_cbranch_scc0 L_nn")
a("v_readfirstlane_b32 s38, v14"); a("s_cmp_eq_u32 s38, 0"); a("s_cselect_b32 s37, s37, s38")
a("v_mov_b32 v14, s37"); a(f"v_mov_b32 v13, {LDS_NONCE}"); a("ds_write_b32 v13, v14")
a.label("L_nn")
a("s_waitcnt lgkmcnt(0)"); a("s_barrier")
stamp(3)
a(f"v_mov_b32 v13, {LDS_NONCE}"); a("ds_read_b32 v14, v13")
a("s_and_b32 s74, s34, 3"); a("s_lshr_b32 s75, s34, 2")
a("s_lshl_b32 s38, s74, 10"); a("v_add_u32 v240, s38, v4"); a("v_add_u32 v241, s38, v5")
a("s_lshl_b32 s38, s75, 11"); a(f"s_add_u32 s38, s38, {LDS_V}"); a("v_add_u32 v242, s38, v4"); a("v_add_u32 v243, s38, v5")
a("v_and_b32 v11, 1, v10"); a("v_lshlrev_b32 v11, 4, v11"); a("v_lshl_add_u32 v11, v10, 5, v11"); a("s_lshl_b32 s38, s74, 7")
a("v_add_u32 v246, s38, v11"); a("v_xor_b32 v247, 16, v246")
a(f"v_add_u32 v244, {LDS_TOT}, v246"); a(f"v_add_u32 v245, {LDS_TOT}, v247")
U = lambda tp, x: 80 + (tp * 4 + x) * 4
TS = 248
def u_loads(blk, buf):
    kb, vb, fb = buf, buf + 8, buf + 24
    for tp in range(2):
        for hf in range(2): a(f"ds_read_b64_tr_b16 {vr(kb+tp*4+hf*2,2)}, v{240+tp} offset:{blk*8192+hf*4096}")
    for x in range(4):
        for hf in range(2): a(f"ds_read_b64_tr_b16 {vr(vb+x*4+hf*2,2)}, v{242+(x&1)} offset:{blk*8192+hf*4096+(x>>1)*1024}")
    for tp in range(2): a(f"ds_read_b128 {vr(fb+tp*4,4)}, v{244+tp} offset:{blk*512}")
BUF = [112, 144]
u_loads(0, BUF[0])
for blk in range(8):
    buf = BUF[blk & 1]; kb, vb, fb = buf, buf + 8, buf + 24
    if blk < 7:
        u_loads(blk + 1, BUF[(blk + 1) & 1]); a("s_waitcnt lgkmcnt(14)")
    else: a("s_waitcnt lgkmcnt(0)")
    if blk == 0:
        for i in range(8): a(f"v_mov_b32 v{TS+i}, v{fb+i}")
    else:
        for tp in range(2):
            for x in range(4):
                for i in (0, 2): a(f"v_pk_mul_f32 {vr(U(tp,x)+i,2)}, {vr(U(tp,x)+i,2)}, {vr(fb+tp*4+i,2)}")
        for i in range(0, 8, 2): a(f"v_pk_mul_f32 {vr(TS+i,2)}, {vr(TS+i,2)}, {vr(fb+i,2)}")
    for tp in range(2):
        for x in range(4):
            c = "0" if blk == 0 else vr(U(tp, x), 4)
            a(f"v_mfma_f32_16x16x32_bf16 {vr(U(tp,x),4)}, {vr(kb+tp*4,4)}, {vr(vb+x*4,4)}, {c}")
a("v_readfirstlane_b32 s37, v14")
stamp(4)
a("s_cmp_eq_u32 s33, 7"); a("s_cbranch_scc1 L_nopub")
def pack_pairs(dst, lo, hi):
    pass
for mask, order in (("s[56:57]", (0, 1)), ("s[58:59]", (1, 0))):
    a(f"s_mov_b64 exec, {mask}")
    for x in range(4):
        for pos, tp in enumerate(order):
            for i in range(2): a(f"v_cvt_pk_bf16_f32 v{112+x*4+pos*2+i}, v{U(tp,x)+2*i}, v{U(tp,x)+2*i+1}")
a("s_mov_b64 exec, -1")
a("s_lshl_b32 s38, s32, 3"); a("s_add_u32 s38, s38, s33"); a(f"s_mul_i32 s76, s38, {SLOT}")
a("s_lshl_b32 s38, s74, 13"); a("s_lshl_b32 s77, s75, 12"); a("s_add_u32 s38, s38, s77"); a("s_add_u32 s38, s38, s76")
a("v_lshlrev_b32 v11, 4, v7")
for x in range(4): a(f"buffer_store_dwordx4 {vr(112+x*4,4)}, v11, {SW}, s38 offen offset:{x*1024} sc0 sc1")
a("s_add_u32 s38, s76, 32768")
for tp in range(2): a(f"buffer_store_dwordx4 {vr(TS+tp*4,4)}, v{246+tp}, {SW}, s38 offen sc0 sc1")
a.label("L_nopub")
a("s_cmp_lt_u32 s34, 4"); a("s_cbranch_scc0 L_noprio"); a("s_setprio 2")
a.label("L_noprio")
QB = lambda t, j: 144 + (t * 4 + j) * 4
O = lambda x, t: 80 + (x * 2 + t) * 4
D = lambda ts, tt: 240 + (ts * 2 + tt) * 4
AB = lambda tt: 8 + tt * 4
a("s_waitcnt vmcnt(0)")
stamp(5)
a("s_cmp_eq_u32 s33, 7"); a("s_cbranch_scc1 L_noflag")
a("s_lshl_b32 s38, s34, 7"); a("s_add_u32 s38, s38, s39"); a("s_lshl_b32 s77, s33, 2"); a("s_add_u32 s38, s38, s77")
a("v_mov_b32 v11, 0"); a("v_mov_b32 v12, s37"); a("s_mov_b64 exec, 1")
a(f"buffer_store_dword v12, v11, {SW}, s38 offen sc0 sc1")
a("s_mov_b64 exec, -1")
a.label("L_noflag")
for j in range(4):
    for t in range(2):
        unpack(112, QR(j, t), 4)
        for i in range(0, 8, 2): a(f"v_pk_mul_f32 {vr(RI(t,j,i),2)}, {vr(RI(t,j,i),2)}, {vr(112+i,2)}")
def cvt_q():
    for t in range(2):
        for j in range(4):
            for i in range(4): a(f"v_cvt_pk_bf16_f32 v{QB(t,j)+i}, v{RI(t,j,2*i)}, v{RI(t,j,2*i+1)}")
cvt_q()
for i in range(64): a(f"v_mov_b32 v{80+i}, 0")
a("s_lshl_b32 s38, s35, 13"); a(f"s_add_u32 s38, s38, {LDS_V}"); a("v_add_u32 v4, s38, v4"); a("v_add_u32 v5, s38, v5")
a("s_lshl_b32 s38, s35, 9"); a(f"s_add_u32 s38, s38, {LDS_TOT}"); a("v_lshlrev_b32 v2, 5, v10"); a("v_add_u32 v2, s38, v2")
a("v_mov_b32 v0, v9")
a("s_mov_b32 s78, s35")
a.label("L_loop")
for ts in range(2):
    for j in range(4): a(f"ds_read_b128 {vr(176+(ts*4+j)*4,4)}, v0 offset:{(ts*4+j)*1024}")
for j in range(4):
    for hf in range(2): a(f"ds_read_b128 {vr(208+j*8+hf*4,4)}, v2 offset:{j*128+hf*16}")
for ts in range(2):
    for j in range(4):
        a(f"s_waitcnt lgkmcnt({15-(ts*4+j)})")
        for tt in range(2):
            c = "0" if j == 0 else vr(D(ts, tt), 4)
            a(f"v_mfma_f32_16x16x32_bf16 {vr(D(ts,tt),4)}, {vr(176+(ts*4+j)*4,4)}, {vr(QB(tt,j),4)}, {c}")
a("s_waitcnt lgkmcnt(0)")
for x in range(8):
    for hf in range(2): a(f"ds_read_b64_tr_b16 {vr(176+x*4+hf*2,2)}, v{4+(x&1)} offset:{hf*4096+(x>>1)*1024}")
for t in range(2):
    for j in range(4):
        for i in range(0, 8, 2): a(f"v_pk_mul_f32 {vr(RI(t,j,i),2)}, {vr(RI(t,j,i),2)}, {vr(208+j*8+i,2)}")
for ts in range(2):
    for tt in range(2):
        mb = 40 if ts <= tt else 48
        for r in range(4): a(f"v_cndmask_b32 v{D(ts,tt)+r}, 0, v{D(ts,tt)+r}, s[{mb+2*r}:{mb+2*r+1}]")
for tt in range(2):
    for ts in range(2):
        for i in range(2): a(f"v_cvt_pk_bf16_f32 v{AB(tt)+ts*2+i}, v{D(ts,tt)+2*i}, v{D(ts,tt)+2*i+1}")
for x in range(8):
    a(f"s_waitcnt lgkmcnt({min(15, 14-2*x)})")
    for tt in range(2): a(f"v_mfma_f32_16x16x32_bf16 {vr(O(x,tt),4)}, {vr(176+x*4,4)}, {vr(AB(tt),4)}, {vr(O(x,tt),4)}")
cvt_q()
for r in range(8): a(f"s_mov_b64 s[{40+2*r}:{41+2*r}], -1")
a("v_subrev_u32 v0, 0x2000, v0"); a("v_subrev_u32 v4, 0x2000, v4"); a("v_subrev_u32 v5, 0x2000, v5"); a("v_subrev_u32 v2, 0x200, v2")
a("s_sub_u32 s78, s78, 1"); a("s_cmp_ge_i32 s78, 0"); a("s_cbranch_scc1 L_loop")
stamp(6)
a("s_cmp_eq_u32 s33, 0"); a("s_cbranch_scc1 L_epi")
a("s_cmp_lt_u32 s34, 4"); a("s_cbranch_scc0 L_barA")
a("v_lshrrev_b32 v10, 4, v7")
a("v_lshrrev_b32 v11, 3, v7"); a("v_lshlrev_b32 v11, 9, v11"); a("v_and_b32 v12, 7, v7"); a("v_lshl_add_u32 v11, v12, 2, v11")
a("s_lshl_b32 s38, s34, 7"); a("s_add_u32 s38, s38, s39")
a("v_cmp_gt_u32 vcc, s33, v12"); a("s_and_b64 s[76:77], vcc, 0xffff"); a("s_mov_b64 exec, s[76:77]")
a.label("L_poll")
a(f"buffer_load_dword v13, v11, {SW}, s38 offen sc0 sc1"); a("s_waitcnt vmcnt(0)")
a("v_cmp_ne_u32 vcc, s37, v13"); a("s_nop 4"); a("s_cbranch_vccz L_polled"); a("s_sleep 2"); a("s_branch L_poll")
a.label("L_polled")
a("s_mov_b64 exec, -1")
stamp(7)
a("v_lshlrev_b32 v11, 4, v7"); a("v_lshlrev_b32 v12, 5, v10")
a("s_lshl_b32 s38, s32, 3"); a(f"s_mul_i32 s76, s38, {SLOT}"); a("s_lshl_b32 s38, s34, 13"); a("s_add_u32 s77, s76, s38")
a("s_lshl_b32 s38, s34, 7"); a("s_add_u32 s76, s76, s38"); a("s_add_u32 s76, s76, 32768")
a("s_add_u32 s79, s77, 4096")
def c_loads(buf, tb):
    for x in range(8): a(f"buffer_load_dwordx4 {vr(buf+x*4,4)}, v11, {SW}, {'s77' if x < 4 else 's79'} offen offset:{(x&3)*1024} sc0 sc1")
    for hf in range(2): a(f"buffer_load_dwordx4 {vr(tb+hf*4,4)}, v12, {SW}, s76 offen offset:{hf*16} sc0 sc1")
    a(f"s_add_u32 s77, s77, {SLOT}"); a(f"s_add_u32 s79, s79, {SLOT}"); a(f"s_add_u32 s76, s76, {SLOT}")
def c_comb(buf, tb):
    for x in range(8):
        for hh in range(2):
            tmp = 13 if False else None
        for i in range(4):
            t0 = 8 if i % 2 == 0 else 14
            a(f"v_lshlrev_b32 v{t0}, 16, v{buf+x*4+i}"); a(f"v_and_b32 v{t0+1}, s70, v{buf+x*4+i}")
            a(f"v_pk_fma_f32 {vr(16+x*8+2*i,2)}, {vr(16+x*8+2*i,2)}, {vr(tb+2*i,2)}, {vr(t0,2)}")
for i in range(64): a(f"v_mov_b32 v{16+i}, 0")
a("s_mov_b32 s78, s33")
c_loads(176, 240)
a.label("L_comb")
a("s_cmp_eq_u32 s78, 1"); a("s_cbranch_scc1 L_comb_lastA")
c_loads(208, 248); a("s_waitcnt vmcnt(10)"); c_comb(176, 240)
a("s_cmp_eq_u32 s78, 2"); a("s_cbranch_scc1 L_comb_lastB")
c_loads(176, 240); a("s_waitcnt vmcnt(10)"); c_comb(208, 248)
a("s_sub_u32 s78, s78, 2"); a("s_branch L_comb")
a.label("L_comb_lastA")
a("s_waitcnt vmcnt(0)"); c_comb(176, 240); a("s_branch L_comb_done")
a.label("L_comb_lastB")
a("s_waitcnt vmcnt(0)"); c_comb(208, 248)
a.label("L_comb_done")
for x in range(8):
    for i in range(4): a(f"v_cvt_pk_bf16_f32 v{176+x*4+i}, v{16+x*8+2*i}, v{16+x*8+2*i+1}")
stamp(8)
a("s_barrier")
a("s_lshl_b32 s38, s34, 13"); a("v_add_u32 v12, s38, v11")
for x in range(8): a(f"ds_write_b128 v12, {vr(176+x*4,4)} offset:{x*1024}")
a("s_waitcnt lgkmcnt(0)"); a("s_branch L_barB")
a.label("L_barA")
a("s_barrier"); a("v_lshlrev_b32 v11, 4, v7")
a.label("L_barB")
a("s_barrier")
stamp(9)
order = [(j, x) for j in range(4) for x in range(8)]
NPF = 12
def s_read(n):
    j, x = order[n]; a(f"ds_read_b128 {vr(176+(n%16)*4,4)}, v11 offset:{(j*8+x)*1024}")
for n in range(NPF): s_read(n)
for n, (j, x) in enumerate(order):
    if n + NPF < 32: s_read(n + NPF); a(f"s_waitcnt lgkmcnt({NPF})")
    else: a(f"s_waitcnt lgkmcnt({31-n})")
    for tt in range(2): a(f"v_mfma_f32_16x16x32_bf16 {vr(O(x,tt),4)}, {vr(176+(n%16)*4,4)}, {vr(QB(tt,j),4)}, {vr(O(x,tt),4)}")
a.label("L_epi")
stamp(10)
for mask, order2 in (("s[56:57]", (0, 1)), ("s[58:59]", (1, 0))):
    a(f"s_mov_b64 exec, {mask}")
    for je in range(4):
        for tt in range(2):
            for pos, tp in enumerate(order2):
                for i in range(2): a(f"v_cvt_pk_bf16_f32 v{16+(je*2+tt)*4+pos*2+i}, v{O(je*2+tp,tt)+2*i}, v{O(je*2+tp,tt)+2*i+1}")
a("s_mov_b64 exec, -1")
for je in range(4):
    for tt in range(2): a(f"buffer_store_dwordx4 {vr(16+(je*2+tt)*4,4)}, v1, {SO}, s36 offen offset:{tt*256+je*64}")
if STAMP:
    a("s_waitcnt vmcnt(0)"); stamp(11)
    a("s_lshl_b32 s38, s2, 3"); a("s_add_u32 s38, s38, s34"); a("s_lshl_b32 s38, s38, 6"); a(f"s_add_u32 s38, s38, {1<<25}")
    a("s_mov_b64 exec, 1"); a("v_mov_b32 v11, 0")
    for i in range(12):
        a(f"v_mov_b32 v12, s{80+i}"); a(f"buffer_store_dword v12, v11, {SW}, s38 offen offset:{4*i}")
a.label("L_end")
a("s_endpgm")
a.raw(""".section .rodata,"a"
.p2align 6
.amdhsa_kernel standalone__gated_linear_recurrence__prompt_kernel
  .amdhsa_next_free_vgpr 256
  .amdhsa_next_free_sgpr 102
  .amdhsa_accum_offset 256
  .amdhsa_group_segment_fixed_size 0
  .amdhsa_kernarg_size 56
  .amdhsa_user_sgpr_count 2
  .amdhsa_user_sgpr_kernarg_segment_ptr 1
  .amdhsa_system_sgpr_workgroup_id_x 1
.end_amdhsa_kernel""")
open(sys.argv[1], "w").write(a.text())
```
